```python
import torch

def _softmax(x, axis=-1):
    return torch.softmax(x, dim=axis)
def _gelu(x):
    return torch.nn.functional.gelu(x, approximate="tanh")
def _silu(x):
    return torch.nn.functional.silu(x)
def _sigmoid(x):
    return torch.sigmoid(x)
def _layernorm(x, axis=-1, eps=1e-5):
    m = x.mean(dim=axis, keepdim=True)
    v = x.var(dim=axis, keepdim=True, unbiased=False)
    return (x - m) / torch.sqrt(v + eps)
def _scatter_add(tgt, idx, src, axis=0):
    return tgt.clone().index_add_(axis, idx, src)
def _segment_sum(src, seg, n):
    out = torch.zeros((n,) + src.shape[1:], dtype=src.dtype)
    return out.index_add_(0, seg, src)
def _pad(x, pw):
    flat = tuple(v for pair in reversed(pw) for v in pair)
    return torch.nn.functional.pad(x, flat)

kernel_name = 'standalone__self_sup_conv_stem_wavlm__speech'

def setup_inputs():

    _w = (lambda a: (lambda t: t.to(torch.bfloat16) if t.is_floating_point() else t)(torch.as_tensor(a)))
    B, T, D, K = 2, 4000, 256, 15
    scale = (K * D) ** -0.5
    return {
        "x": _w((lambda *s: torch.randn(*s, dtype=torch.bfloat16) * 0.05)(B, T, D)),
        "w": _w((lambda *s: torch.randn(*s, dtype=torch.bfloat16) * 0.05)(K, D, D) * scale),
        "gn_gamma": _w((lambda *s: torch.randn(*s, dtype=torch.bfloat16) * 0.05)(D) * 0.1 + 1.0),
        "gn_beta": _w((lambda *s: torch.randn(*s, dtype=torch.bfloat16) * 0.05)(D) * 0.1),
    }

def reference(x, w, gn_gamma, gn_beta):
    B, T, D = x.shape
    K = w.shape[0]
    s = 2
    L = (T - K) // s + 1
    h = torch.einsum('blc,cd->bld', x[:, 0:s * L:s, :], w[0])
    for i in range(1, K):
        h = h + torch.einsum('blc,cd->bld', x[:, i:i + s * L:s, :], w[i])
    mu = torch.einsum('bld->bd', h)[:, None, :] / L
    var = torch.einsum('bld->bd', (h - mu) ** 2)[:, None, :] / L
    h = (h - mu) / torch.sqrt(var + 1e-5)
    h = h * gn_gamma[None, None, :] + gn_beta[None, None, :]
    return _gelu(h)
```

```python
import sys, struct

KNAME = "standalone__self_sup_conv_stem_wavlm__speech_kernel"
L_OUT = 1993
ASTG = 19008
ABLK = 1056
HP = 272
SSOFF = 64 * HP
ORDER = [0, 2, 4, 6, 8, 10, 12, 14, 1, 3, 5, 7, 9, 11, 13]


def f32(x):
    return "0x%08x" % struct.unpack("<I", struct.pack("<f", x))[0]


HEADER = """; Kernarg layout for this problem (56 bytes, ptrs only, base s[0:1]):
"""


def gen(R=10, D=7, stamps=False, pf=(), spread=3, codepf=True, xcdmap=True, atom_step=4, cnt_step=50,
        aspread=5, consprio=0, loadprio=0, outflags=""):
    NA = 4
    BBASE = NA * ASTG
    LDS = BBASE + R * 8192
    assert LDS <= 163840 and D <= R - 3
    o = []
    A = o.append
    A(HEADER + f"; @launch grid=(256,1,1) block=(512,1,1) lds={LDS}")
    A('.amdgcn_target "amdgcn-amd-amdhsa--gfx950"')
    A(f".text\n.globl {KNAME}\n.p2align 8\n.type {KNAME},@function\n{KNAME}:")
    if stamps:
        A("s_memtime s[60:61]")
        A("s_memrealtime s[58:59]")
    A("s_cmp_ge_u32 s2, 0x100")
    A("s_cbranch_scc1 L_end")
    A("s_load_dwordx2 s[4:5], s[0:1], 0")
    A("s_load_dwordx2 s[8:9], s[0:1], 8")
    A("s_load_dwordx2 s[12:13], s[0:1], 16")
    A("s_load_dwordx2 s[16:17], s[0:1], 24")
    A("s_load_dwordx2 s[20:21], s[0:1], 32")
    A("s_load_dwordx2 s[24:25], s[0:1], 40")
    A("s_load_dwordx2 s[28:29], s[0:1], 48")
    A("v_lshrrev_b32 v1, 6, v0")
    A("v_and_b32 v2, 63, v0")
    A("v_readfirstlane_b32 s3, v1")
    if codepf:
        A("s_getpc_b64 s[40:41]")
        A("v_lshlrev_b32 v3, 5, v0")
        A("v_and_b32 v3, 0x3f80, v3")
        A("global_load_dword v4, v3, s[40:41]")
    A("s_mov_b32 s6, 4096000")
    A("s_mov_b32 s7, 0x20000")
    A("s_mov_b32 s10, 1966080")
    A("s_mov_b32 s11, 0x20000")
    A("s_movk_i32 s14, 512")
    A("s_mov_b32 s15, 0x20000")
    A("s_movk_i32 s18, 512")
    A("s_mov_b32 s19, 0x20000")
    A("s_mov_b32 s22, 2040832")
    A("s_mov_b32 s23, 0x20000")
    A("s_movk_i32 s26, 256")
    A("s_mov_b32 s27, 0x20000")
    A("s_mov_b32 s30, %d" % (0x200000 if stamps else 131072))
    A("s_mov_b32 s31, 0x20000")
    if xcdmap:
        A("s_bfe_u32 s34, s2, 0x10002")
        A("s_bfe_u32 s32, s2, 0x10001")
        A("s_lshl_b32 s32, s32, 4")
        A("s_bfe_u32 s35, s2, 0x40003")
        A("s_add_u32 s32, s32, s35")
        A("s_and_b32 s33, s2, 1")
        A("s_lshl_b32 s33, s33, 1")
        A("s_lshr_b32 s35, s2, 7")
        A("s_add_u32 s33, s33, s35")
    else:
        A("s_and_b32 s32, s2, 31")
        A("s_bfe_u32 s33, s2, 0x20005")
        A("s_lshr_b32 s34, s2, 7")
    A("s_mul_i32 s36, s34, 2048000")
    A("s_lshl_b32 s35, s32, 16")
    A("s_add_u32 s36, s36, s35")
    A("s_cmp_ge_u32 s3, 4")
    A("s_cbranch_scc1 L_cons")

    if loadprio:
        A(f"s_setprio {loadprio}")
    A("v_lshrrev_b32 v5, 3, v2")
    A("v_and_b32 v6, 7, v2")
    A("v_lshlrev_b32 v7, 9, v5")
    A("v_lshl_add_u32 v8, v6, 4, v7")
    A("s_lshl_b32 s37, s3, 14")
    A("s_add_u32 s37, s37, s36")
    A("v_add_u32 v10, s37, v8")
    A(f"v_add_u32 v11, {4096-ABLK}, v10")
    A(f"v_add_u32 v12, {2*(4096-ABLK)}, v10")
    A(f"v_add_u32 v13, {3*(4096-ABLK)}, v10")
    A("s_lshl_b32 s37, s3, 11")
    A("s_add_u32 s37, s37, s36")
    A("s_add_u32 s37, s37, 0x10000")
    A("v_add_u32 v14, s37, v8")
    A("v_and_b32 v9, 2, v5")
    A("v_lshlrev_b32 v9, 4, v9")
    A("v_xor_b32 v8, v8, v9")
    A("s_lshl_b32 s37, s3, 13")
    A("s_lshl_b32 s38, s33, 7")
    A("s_add_u32 s37, s37, s38")
    A("v_add_u32 v15, s37, v8")
    A("v_xor_b32 v16, 64, v15")
    A("v_add_u32 v16, 0xc00, v16")
    A(f"s_mul_i32 s42, s3, {4*ABLK}")
    A("s_lshr_b32 s43, s3, 1")
    A(f"s_mul_i32 s43, s43, {ABLK}")
    A("s_and_b32 s37, s3, 1")
    A("s_lshl_b32 s37, s37, 9")
    A("s_add_u32 s43, s43, s37")
    A(f"s_add_u32 s43, s43, {16*ABLK}")
    A("s_lshl_b32 s44, s3, 11")
    A(f"s_add_u32 s44, s44, {BBASE}")
    A("s_mov_b32 m0, s42")
    A("s_waitcnt lgkmcnt(0)")
    if stamps:
        A("s_memtime s[62:63]")

    issued = []
    if codepf:
        issued.append(("pf",))

    def a_load(s, k, setm0=True):
        soff = "0" if s == 0 else "s45"
        if k < 4:
            if setm0:
                A(f"s_add_u32 m0, s42, {s*ASTG}")
                A(f"s_movk_i32 s45, {128*s}")
            A(f"buffer_load_dwordx4 v{10+k}, s[4:7], {soff} offen offset:{k*ABLK} lds")
        else:
            A(f"s_add_u32 m0, s43, {s*ASTG}")
            A("s_mov_b32 exec_hi, 0")
            A(f"buffer_load_dwordx4 v14, s[4:7], {soff} offen lds")
            A("s_mov_b32 exec_hi, -1")
        issued.append(("A", s, k))

    def b_load(t):
        s, tau = divmod(t, 15)
        slot = t % R
        A(f"s_add_u32 m0, s44, {slot*8192}")
        A(f"s_mov_b32 s46, {ORDER[tau]*131072 + s*32768}")
        A("buffer_load_dwordx4 v15, s[8:11], s46 offen lds")
        A("buffer_load_dwordx4 v16, s[8:11], s46 offen offset:1024 lds")
        issued.append(("B", t, 0))
        issued.append(("B", t, 1))

    a_with = {}
    tstar = {}
    for s in range(1, 4):
        ts = 15 * s - spread
        tstar[s] = ts
        for k in range(5):
            tt = ts - (aspread - 1) + (k * aspread) // 5
            a_with.setdefault(tt, []).append((s, k))

    def issue_step(t):
        for (s, k) in a_with.get(t, []):
            a_load(s, k)
        b_load(t)

    for k in range(4):
        a_load(0, k, setm0=False)
    a_load(0, 4)
    for t in range(D):
        issue_step(t)
    for t in range(60):
        if t + D < 60:
            issue_step(t + D)
        last = issued.index(("B", t, 1))
        n = len(issued) - 1 - last
        assert n <= 63
        A(f"s_waitcnt vmcnt({n})")
        A("s_barrier")
        if stamps and t in (0, 15, 30, 45, 59):
            idx = {0: 64, 15: 66, 30: 68, 45: 70, 59: 72}[t]
            A(f"s_memtime s[{idx}:{idx+1}]")
    A("s_branch L_epi")

    A("L_cons:")
    if consprio:
        A(f"s_setprio {consprio}")
    A("s_sub_u32 s3, s3, 4")
    A("v_and_b32 v5, 15, v2")
    A("v_lshrrev_b32 v6, 4, v2")
    A(f"v_mul_u32_u24 v10, {ABLK}, v5")
    A("v_lshl_add_u32 v10, v6, 4, v10")
    A("v_bfe_u32 v7, v2, 2, 2")
    A("v_and_b32 v8, 3, v2")
    A("v_lshlrev_b32 v8, 3, v8")
    A("s_lshl_b32 s37, s3, 5")
    A("v_add_u32 v8, s37, v8")
    A("v_and_b32 v9, 2, v7")
    A("v_lshlrev_b32 v9, 4, v9")
    A("v_xor_b32 v8, v8, v9")
    A("v_and_b32 v9, 1, v6")
    A("v_lshlrev_b32 v9, 6, v9")
    A("v_xor_b32 v8, v8, v9")
    A("v_lshl_add_u32 v8, v7, 7, v8")
    A("v_lshl_add_u32 v8, v6, 10, v8")
    A(f"v_add_u32 v11, {BBASE}, v8")
    A(f"v_add_u32 v12, {BBASE+65536}, v8")
    A("s_lshl_b32 s38, s34, 2")
    A("s_add_u32 s38, s38, s33")
    A("s_lshl_b32 s37, s33, 6")
    A("s_lshl_b32 s39, s3, 4")
    A("s_add_u32 s37, s37, s39")
    A("v_add_lshl_u32 v13, v5, s37, 1")
    A("s_lshl_b32 s47, s38, 14")
    A("s_lshl_b32 s37, s32, 7")
    A("s_add_u32 s48, s47, s37")
    A("v_lshlrev_b32 v14, 3, v5")
    A("v_lshl_add_u32 v15, v6, 12, v14")
    A("v_add_u32 v15, s48, v15")
    A("v_mov_b32 v32, -1")
    A("v_mov_b32 v33, -1")
    A("s_lshl_b32 s49, s38, 5")
    A("v_mov_b32 v34, s49")
    A("v_mov_b32 v35, 1")
    if pf:
        A("s_and_b32 s37, s32, 15")
        A("s_lshl_b32 s37, s37, 2")
        A("s_add_u32 s37, s37, s3")
        A("s_lshl_b32 s37, s37, 9")
        A("s_lshl_b32 s39, s33, 7")
        A("s_add_u32 s37, s37, s39")
        A("v_lshlrev_b32 v36, 17, v5")
        A("v_lshl_add_u32 v36, v6, 15, v36")
        A("v_add_u32 v36, s37, v36")
        A("s_and_b32 s37, s33, 1")
        A("s_lshl_b32 s37, s37, 2")
        A("s_add_u32 s37, s37, s3")
        A("s_lshl_b32 s37, s37, 13")
        A("s_add_u32 s37, s37, s36")
        A("v_lshlrev_b32 v37, 9, v5")
        A("v_lshl_add_u32 v37, v6, 7, v37")
        A("v_add_u32 v37, s37, v37")
    A("s_waitcnt lgkmcnt(0)")
    A("s_cmp_lg_u32 s3, 0")
    A("s_cbranch_scc1 L_noclr")
    A("buffer_store_dwordx2 v[32:33], v15, s[28:31], 0 offen sc1")
    A("L_noclr:")
    A("buffer_load_ushort v40, v13, s[12:15], 0 offen")
    A("buffer_load_ushort v41, v13, s[16:19], 0 offen")

    def do_pf(when):
        for (tt, mask_w, mask_x) in pf:
            if tt == when:
                if mask_w:
                    A(f"s_mov_b32 exec_lo, {mask_w & 0xffffffff:#x}")
                    A(f"s_mov_b32 exec_hi, {mask_w >> 32:#x}")
                    A("buffer_load_dword v38, v36, s[8:11], 0 offen")
                if mask_x:
                    A(f"s_mov_b32 exec_lo, {mask_x & 0xffffffff:#x}")
                    A(f"s_mov_b32 exec_hi, {mask_x >> 32:#x}")
                    A("buffer_load_dword v39, v37, s[4:7], 0 offen")
                A("s_mov_b64 exec, -1")
    do_pf(-1)

    ACC = 16
    BREG = 48
    APOOL = 64
    free = list(range(APOOL, APOOL + 4 * 20, 4))
    areg = {}
    first, lastu = {}, {}
    for t in range(60):
        s, tau = divmod(t, 15)
        for ks in range(2):
            for j in range(4):
                key = (s, ORDER[tau] + 2 * j, ks)
                first.setdefault(key, t)
                lastu[key] = t
    rd = {t: [] for t in range(60)}
    for key, t in first.items():
        s, u, ks = key
        tau = t % 15
        j = (u - ORDER[tau]) // 2
        if tau in (0, 8) and t > 0 and j < 3:
            tt = t - spread + (j * spread) // 3
            rd[tt].append(key)
        else:
            rd[t].append(key)
    lds_q = []

    def a_read(key):
        s, u, ks = key
        r = free.pop(0)
        areg[key] = r
        off = s * ASTG + (u >> 3) * ABLK + (u & 7) * 128 + ks * 64
        A(f"ds_read_b128 v[{r}:{r+3}], v10 offset:{off}")
        lds_q.append(("A",) + key)

    def b_read(t, ks, hf):
        slot = t % R
        r = BREG + (t & 1) * 8 + ks * 4 + hf * 2
        off = slot * 8192 + ks * 4096 + hf * 512
        v = 11
        if off >= 65536:
            off -= 65536
            v = 12
        A(f"ds_read_b64_tr_b16 v[{r}:{r+1}], v{v} offset:{off}")
        lds_q.append(("B", t, ks, hf))

    def need(tags):
        idx = -1
        for tg in tags:
            if tg in lds_q:
                idx = max(idx, lds_q.index(tg))
        if idx >= 0:
            n = len(lds_q) - 1 - idx
            assert n <= 15
            A(f"s_waitcnt lgkmcnt({n})")
            del lds_q[:idx + 1]

    def reads_for(t):
        lst = []
        now = [k for k in rd[t] if first[k] == t]
        early = [k for k in rd[t] if first[k] != t]
        for ks in range(2):
            lst.append(("b", t, ks, 0))
            lst.append(("b", t, ks, 1))
            lst += [("a", k) for k in now if k[2] == ks]
        lst += [("a", k) for k in early]
        return lst

    def emit_read(x):
        if x[0] == "b":
            b_read(*x[1:])
        else:
            a_read(x[1])

    A("s_barrier")
    for x in reads_for(0):
        emit_read(x)
    started = set()
    for t in range(60):
        s, tau = divmod(t, 15)
        nxt = []
        if t + 1 < 60:
            A("s_barrier")
            nxt = reads_for(t + 1)
        do_pf(t)
        if t == atom_step:
            A("s_cmp_lg_u32 s3, 0")
            A("s_cbranch_scc1 L_noatom")
            A("s_waitcnt vmcnt(0)")
            A("s_mov_b64 exec, 1")
            A("buffer_atomic_add v35, v34, s[24:27], 0 offen sc1")
            A("s_mov_b64 exec, -1")
            A("L_noatom:")
        if t == cnt_step:
            A("buffer_load_dword v42, v34, s[24:27], 0 offen sc1")
        m = 0
        for ks in range(2):
            keys = [(s, ORDER[tau] + 2 * j, ks) for j in range(4)]
            for j in range(4):
                need([("B", t, ks, 0), ("B", t, ks, 1), ("A",) + keys[j]])
                a = areg[keys[j]]
                b = BREG + (t & 1) * 8 + ks * 4
                d = ACC + 4 * j
                c = f"v[{d}:{d+3}]" if j in started else "0"
                started.add(j)
                A(f"v_mfma_f32_16x16x32_bf16 v[{d}:{d+3}], v[{a}:{a+3}], v[{b}:{b+3}], {c}")
                if lastu[keys[j]] == t:
                    free.append(a)
                if nxt:
                    emit_read(nxt.pop(0))
                m += 1
        assert not nxt
    assert not lds_q

    A("s_lshl_b32 s37, s3, 12")
    A("s_add_u32 s47, s47, s37")
    A("s_add_u32 s48, s48, s37")
    A("v_and_b32 v9, 1, v6")
    A("v_lshl_add_u32 v14, v9, 2, v14")
    A("v_add_u32 v14, s48, v14")
    A("v_lshlrev_b32 v7, 30, v6")
    A("v_and_b32 v7, 0x80000000, v7")
    A("v_or_b32 v14, v14, v7")
    A("v_lshl_add_u32 v15, v2, 3, s47")
    if stamps:
        A("s_memtime s[74:75]")
    A("s_cmp_lg_u32 s32, 31")
    A("s_cbranch_scc1 L_nomask")
    A("v_lshlrev_b32 v7, 4, v6")
    nvalid = L_OUT - 31 * 64
    for j in range(4):
        for rr in range(4):
            A(f"v_cmp_gt_i32 vcc, {nvalid - 4*rr - j}, v7")
            A("s_nop 1")
            A(f"v_cndmask_b32 v{ACC+4*j+rr}, 0, v{ACC+4*j+rr}, vcc")
    A("L_nomask:")
    a = ACC
    A(f"v_pk_add_f32 v[44:45], v[{a}:{a+1}], v[{a+2}:{a+3}]")
    A(f"v_pk_mul_f32 v[46:47], v[{a}:{a+1}], v[{a}:{a+1}]")
    A(f"v_pk_fma_f32 v[46:47], v[{a+2}:{a+3}], v[{a+2}:{a+3}], v[46:47]")
    for p in range(2, 8):
        r = a + 2 * p
        A(f"v_pk_add_f32 v[44:45], v[44:45], v[{r}:{r+1}]")
        A(f"v_pk_fma_f32 v[46:47], v[{r}:{r+1}], v[{r}:{r+1}], v[46:47]")
    A("v_add_f32 v44, v44, v45")
    A("v_add_f32 v46, v46, v47")
    A("s_nop 1")
    A("v_permlane16_swap_b32 v44, v46")
    A("v_add_f32 v44, v44, v46")
    A("v_mov_b32 v46, v44")
    A("s_nop 1")
    A("v_permlane32_swap_b32 v44, v46")
    A("v_add_f32 v44, v44, v46")
    A("v_min_u32 v44, -2, v44")
    A("buffer_store_dword v44, v14, s[28:31], 0 offen sc1")
    A("s_mov_b32 s50, 0")
    A("s_waitcnt vmcnt(1)")
    A("L_cntchk:")
    A("v_cmp_ne_u32 vcc, 32, v42")
    A("s_cbranch_vccz L_cntok")
    A("s_add_u32 s50, s50, 1")
    A("s_cmp_ge_u32 s50, 0x40000")
    A("s_cbranch_scc1 L_cntok")
    A("buffer_load_dword v42, v34, s[24:27], 0 offen sc1")
    A("s_waitcnt vmcnt(0)")
    A("s_branch L_cntchk")
    A("L_cntok:")
    G = 64
    for i in range(8):
        A(f"buffer_load_dwordx2 v[{G+2*i}:{G+2*i+1}], v15, s[28:31], 0 offen offset:{512*i} sc1")
    if stamps:
        A("s_memtime s[76:77]")
    A(f"v_mul_u32_u24 v7, {16*HP}, v6")
    A("s_lshl_b32 s37, s3, 6")
    A("v_lshl_add_u32 v8, v5, 2, s37")
    A("v_add_u32 v7, v7, v8")
    for j in range(4):
        for rr in range(4):
            A(f"ds_write_b32 v7, v{ACC+4*j+rr} offset:{(4*rr+j)*HP}")
    A("v_lshl_add_u32 v8, v9, 8, v8")
    A("v_lshlrev_b32 v40, 16, v40")
    A("v_lshlrev_b32 v41, 16, v41")
    A("v_cmp_eq_u32 s[52:53], 1, v9")
    A("s_mov_b32 s51, 1")
    A("s_waitcnt lgkmcnt(0)")
    A("s_branch L_epi2")

    A("L_epi:")
    A("s_mov_b32 s51, 0")
    A("L_epi2:")
    A("v_lshrrev_b32 v3, 3, v0")
    A("v_and_b32 v4, 7, v0")
    A(f"v_mul_u32_u24 v36, {HP}, v3")
    A("v_lshlrev_b32 v37, 5, v4")
    A("v_add_u32 v36, v36, v37")
    A("s_barrier")
    A("ds_read_b128 v[16:19], v36")
    A("ds_read_b128 v[20:23], v36 offset:16")
    if stamps:
        A("s_memtime s[78:79]")
    A(f"s_mul_i32 s37, s34, {L_OUT}")
    A("s_lshl_b32 s39, s32, 6")
    A("s_add_u32 s37, s37, s39")
    A("s_lshl_b32 s37, s37, 9")
    A("s_lshl_b32 s54, s33, 7")
    A("s_add_u32 s37, s37, s54")
    A("v_lshlrev_b32 v38, 9, v3")
    A("v_lshl_add_u32 v38, v4, 4, v38")
    A("v_add_u32 v38, s37, v38")
    A(f"s_sub_u32 s39, {L_OUT}, s39")
    A("v_cmp_gt_u32 vcc, s39, v3")
    A("v_bfrev_b32 v39, 1")
    A("s_mov_b32 s56, " + f32(-2.0 * 1.4426950408889634 * 0.7978845608028654 * 0.044715))
    A("s_mov_b32 s57, " + f32(-2.0 * 1.4426950408889634 * 0.7978845608028654))
    A("v_cndmask_b32 v38, v39, v38, vcc")
    A("s_cmp_eq_u32 s51, 0")
    A("s_cbranch_scc1 L_e2")
    A("s_mov_b32 s50, 0")
    A("L_poll:")
    A("s_waitcnt vmcnt(6)")
    A(f"v_pk_add_f32 v[44:45], v[{G}:{G+1}], v[{G+2}:{G+3}]")
    for i in range(2, 8):
        A(f"s_waitcnt vmcnt({7-i})")
        A(f"v_pk_add_f32 v[44:45], v[44:45], v[{G+2*i}:{G+2*i+1}]")
    A("v_cmp_u_f32 vcc, v44, v45")
    A("s_cbranch_vccz L_gok")
    A(f"v_max3_u32 v46, v{G}, v{G+1}, v{G+2}")
    for i in range(3, 15, 2):
        A(f"v_max3_u32 v46, v46, v{G+i}, v{G+i+1}")
    A(f"v_max_u32 v46, v46, v{G+15}")
    A("v_cmp_eq_u32 vcc, -1, v46")
    A("s_cbranch_vccz L_gok")
    A("s_add_u32 s50, s50, 1")
    A("s_cmp_ge_u32 s50, 0x40000")
    A("s_cbranch_scc1 L_gok")
    for i in range(8):
        A(f"buffer_load_dwordx2 v[{G+2*i}:{G+2*i+1}], v15, s[28:31], 0 offen offset:{512*i} sc1")
    A("s_branch L_poll")
    A("L_gok:")
    if stamps:
        A("s_memtime s[80:81]")
    A("v_permlane16_swap_b32 v44, v45")
    A("v_add_f32 v44, v44, v45")
    A("v_mov_b32 v45, v44")
    A("s_nop 1")
    A("v_permlane32_swap_b32 v44, v45")
    A("v_add_f32 v44, v44, v45")
    A("v_mul_f32 v44, " + f32(1.0 / L_OUT) + ", v44")
    A("v_mov_b32 v45, v44")
    A("s_nop 1")
    A("v_permlane16_swap_b32 v44, v45")
    A("v_fma_f32 v45, -v44, v44, v45")
    A("v_max_f32 v45, 0, v45")
    A("v_add_f32 v45, " + f32(1e-5) + ", v45")
    A("v_rsq_f32 v45, v45")
    A("s_nop 0")
    A("v_mul_f32 v45, v45, v40")
    A("v_fma_f32 v44, -v44, v45, v41")
    A("v_cndmask_b32 v45, v45, v44, s[52:53]")
    A(f"ds_write_b32 v8, v45 offset:{SSOFF}")
    A("s_waitcnt lgkmcnt(0)")
    A("L_e2:")
    A("s_barrier")
    A(f"ds_read_b128 v[24:27], v37 offset:{SSOFF}")
    A(f"ds_read_b128 v[48:51], v37 offset:{SSOFF+256}")
    A(f"ds_read_b128 v[28:31], v37 offset:{SSOFF+16}")
    A(f"ds_read_b128 v[52:55], v37 offset:{SSOFF+256+16}")
    if stamps:
        A("s_memtime s[82:83]")
        A("s_waitcnt lgkmcnt(0)")
    A("s_waitcnt lgkmcnt(2)")
    for p in range(4):
        if p == 2:
            A("s_waitcnt lgkmcnt(0)")
        r = 16 + 2 * p
        A(f"v_pk_fma_f32 v[{r}:{r+1}], v[{r}:{r+1}], v[{24+2*p}:{25+2*p}], v[{48+2*p}:{49+2*p}]")
    for p in range(4):
        r = 16 + 2 * p
        A(f"v_pk_mul_f32 v[{24+2*p}:{25+2*p}], v[{r}:{r+1}], v[{r}:{r+1}]")
    for p in range(4):
        q = 24 + 2 * p
        A(f"v_pk_fma_f32 v[{q}:{q+1}], v[{q}:{q+1}], s[56:57], s[56:57] op_sel:[0,0,1] op_sel_hi:[1,0,1]")
    for p in range(4):
        r = 16 + 2 * p
        q = 24 + 2 * p
        A(f"v_pk_mul_f32 v[{q}:{q+1}], v[{q}:{q+1}], v[{r}:{r+1}]")
    for p in range(8):
        A(f"v_exp_f32 v{24+p}, v{24+p}")
    for p in range(4):
        q = 24 + 2 * p
        A(f"v_pk_add_f32 v[{q}:{q+1}], v[{q}:{q+1}], 1.0 op_sel_hi:[1,0]")
    for p in range(8):
        A(f"v_rcp_f32 v{24+p}, v{24+p}")
    for p in range(4):
        r = 16 + 2 * p
        q = 24 + 2 * p
        A(f"v_pk_mul_f32 v[{r}:{r+1}], v[{q}:{q+1}], v[{r}:{r+1}]")
    for p in range(4):
        r = 16 + 2 * p
        A(f"v_cvt_pk_bf16_f32 v{24+p}, v{r}, v{r+1}")
    A(f"buffer_store_dwordx4 v[24:27], v38, s[20:23], 0 offen {outflags}")
    if stamps:
        A("s_memtime s[84:85]")
        A("s_waitcnt vmcnt(0)")
        A("s_memtime s[86:87]")
        A("s_memrealtime s[88:89]")
        A("s_getreg_b32 s90, hwreg(HW_REG_XCC_ID)")
        A("s_getreg_b32 s91, hwreg(HW_REG_HW_ID)")
        A("s_waitcnt lgkmcnt(0)")
        A("s_cmp_lg_u32 s3, 0")
        A("s_cbranch_scc1 L_end")
        A("s_lshl_b32 s37, s2, 1")
        A("s_add_u32 s37, s37, s51")
        A("s_lshl_b32 s37, s37, 7")
        A("s_add_u32 s37, s37, 0x100000")
        A("v_mov_b32 v3, s37")
        A("s_mov_b64 exec, 1")
        for i, sr in enumerate(range(62, 88, 2)):
            A(f"s_sub_u32 s37, s{sr}, s60")
            A("v_mov_b32 v4, s37")
            A(f"buffer_store_dword v4, v3, s[28:31], 0 offen offset:{4*i}")
        for i, sr in ((16, 58), (17, 88), (18, 90), (19, 91), (20, 50)):
            A(f"v_mov_b32 v4, s{sr}")
            A(f"buffer_store_dword v4, v3, s[28:31], 0 offen offset:{4*i}")
    A("L_end:")
    A("s_endpgm")
    if codepf:
        A(".fill 4096, 4, 0xbf800000")
    A(f""".section .rodata,"a"
.p2align 6
.amdhsa_kernel {KNAME}
  .amdhsa_next_free_vgpr 144
  .amdhsa_next_free_sgpr 96
  .amdhsa_accum_offset 144
  .amdhsa_group_segment_fixed_size 0
  .amdhsa_kernarg_size 56
  .amdhsa_user_sgpr_count 2
  .amdhsa_user_sgpr_kernarg_segment_ptr 1
  .amdhsa_system_sgpr_workgroup_id_x 1
.end_amdhsa_kernel""")
    return "\n".join(o) + "\n"


if __name__ == "__main__":
    kw = {}
    for a in sys.argv[2:]:
        k, v = a.split("=", 1)
        kw[k] = eval(v)
    open(sys.argv[1], "w").write(gen(**kw))
```
